```python
import torch

def _softmax(x, axis=-1):
    return torch.softmax(x, dim=axis)
def _gelu(x):
    return torch.nn.functional.gelu(x, approximate="tanh")
def _silu(x):
    return torch.nn.functional.silu(x)
def _sigmoid(x):
    return torch.sigmoid(x)
def _layernorm(x, axis=-1, eps=1e-5):
    m = x.mean(dim=axis, keepdim=True)
    v = x.var(dim=axis, keepdim=True, unbiased=False)
    return (x - m) / torch.sqrt(v + eps)
def _scatter_add(tgt, idx, src, axis=0):
    return tgt.clone().index_add_(axis, idx, src)
def _segment_sum(src, seg, n):
    out = torch.zeros((n,) + src.shape[1:], dtype=src.dtype)
    return out.index_add_(0, seg, src)
def _pad(x, pw):
    flat = tuple(v for pair in reversed(pw) for v in pair)
    return torch.nn.functional.pad(x, flat)

kernel_name = 'standalone__batchnorm__prompt'

def setup_inputs():

    _w = (lambda a: (lambda t: t.to(torch.bfloat16) if t.is_floating_point() else t)(torch.as_tensor(a)))
    B, S, C = 1, 2048, 640
    K = 3
    return {
        "x": _w((lambda *s: torch.randn(*s, dtype=torch.bfloat16) * 0.05)(B, S, C)),
        "w": _w((lambda *s: torch.randn(*s, dtype=torch.bfloat16) * 0.05)(K, C, C) * (1.0 / (K * C) ** 0.5)),
        "mean": _w((lambda *s: torch.randn(*s, dtype=torch.bfloat16) * 0.05)(C) * 0.1),
        "var": _w(torch.abs((lambda *s: torch.randn(*s, dtype=torch.bfloat16) * 0.05)(C)) + 0.5),
        "g": _w((lambda *s: torch.randn(*s, dtype=torch.bfloat16) * 0.05)(C) + 1.0),
        "b": _w((lambda *s: torch.randn(*s, dtype=torch.bfloat16) * 0.05)(C) * 0.1),
    }

def reference(x, w, mean, var, g, b):
    K = 3
    P = K // 2
    S = x.shape[1]
    xp = _pad(x, ((0, 0), (P, P), (0, 0)))
    y = sum(torch.einsum('bsc,cd->bsd', xp[:, k:k + S, :], w[k]) for k in range(K))
    inv_std = 1.0 / torch.sqrt(var + 1e-5)
    y = (y - mean) * (g * inv_std) + b
    return _silu(y)
```

```python
import sys
NAME="standalone__batchnorm__prompt"
hdr=open('standalone__batchnorm__prompt.s.ref').read().split('; Override launch')[0]
L=[]
a=L.append
a(hdr.rstrip())
a("; @launch grid=(640,1,1) block=(64,1,1) lds=0")
a('.amdgcn_target "amdgcn-amd-amdhsa--gfx950"')
a(".text")
a(f".globl {NAME}_kernel")
a(".p2align 8")
a(f".type {NAME}_kernel,@function")
a(f"{NAME}_kernel:")
a("s_cmp_ge_u32 s2, 640")
a("s_cbranch_scc1 L_end")
a("s_load_dwordx4 s[4:7], s[0:1], 0")
a("s_load_dwordx8 s[8:15], s[0:1], 16")
a("s_load_dwordx2 s[16:17], s[0:1], 48")
a("s_mov_b32 s18, 0x1999999a")
a("s_mul_hi_u32 s19, s2, s18")
a("s_mul_i32 s20, s19, 10")
a("s_sub_u32 s20, s2, s20")
a("s_lshl_b32 s19, s19, 5")
a("s_lshl_b32 s20, s20, 7")
a("v_and_b32 v1, 15, v0")
a("v_lshrrev_b32 v2, 4, v0")
a("v_lshlrev_b32 v3, 1, v1")
a("v_add_u32 v3, s19, v3")
a("s_movk_i32 s21, 1280")
a("v_mul_lo_u32 v8, v3, s21")
a("v_lshl_add_u32 v8, v2, 4, v8")
a("v_subrev_u32 v4, 1280, v8")
a("v_mov_b32 v9, 0x7f000000")
a("v_cmp_eq_u32 vcc, 0, v3")
a("s_nop 1")
a("v_cndmask_b32 v4, v4, v9, vcc")
a("v_mov_b32 v5, v8")
a("v_add_u32 v6, 1280, v8")
a("v_add_u32 v7, 2560, v8")
a("s_movk_i32 s21, 10240")
a("v_mul_lo_u32 v10, v2, s21")
a("v_lshl_add_u32 v10, v1, 3, v10")
a("v_add_u32 v10, s20, v10")
a("v_add_u32 v11, 5120, v10")
a("s_waitcnt lgkmcnt(0)")
a("s_mov_b32 s24, s4"); a("s_and_b32 s25, s5, 0xffff"); a("s_mov_b32 s26, 2621440"); a("s_mov_b32 s27, 0x20000")
a("s_mov_b32 s28, s6"); a("s_and_b32 s29, s7, 0xffff"); a("s_mov_b32 s30, 2457600"); a("s_mov_b32 s31, 0x20000")
a("s_mov_b32 s32, s16"); a("s_and_b32 s33, s17, 0xffff"); a("s_mov_b32 s34, 2621440"); a("s_mov_b32 s35, 0x20000")
a("s_mov_b32 s40, 0x05040100"); a("s_mov_b32 s41, 0x07060302")
ACC=16
XF=48
WR=64
WF=112
for r in range(32): a(f"v_mov_b32 v{ACC+r}, 0")
a("s_mov_b32 s36, 0")
a("s_mov_b32 s37, 0")
a("L_loop:")
a("s_add_u32 s38, s37, 819200")
a("s_add_u32 s39, s37, 1638400")
for j in range(4): a(f"buffer_load_dwordx4 v[{XF+4*j}:{XF+4*j+3}], v{4+j}, s[24:27], s36 offen")
for t in range(3):
    for e in range(8):
        a(f"buffer_load_dwordx2 v[{WR+t*16+e*2}:{WR+t*16+e*2+1}], v{10+(e>>2)}, s[28:31], s{37+t} offen offset:{(e&3)*1280}")
a("s_waitcnt vmcnt(0)")
for t in range(3):
    for j in range(4):
        for q in range(4):
            lo=WR+t*16+(2*q)*2+(j>>1); hi=WR+t*16+(2*q+1)*2+(j>>1)
            a(f"v_perm_b32 v{WF+t*16+j*4+q}, v{hi}, v{lo}, s{40+(j&1)}")
a("s_nop 1")
for t in range(3):
    for f in range(2):
        for j in range(4):
            c=ACC+(f*4+j)*4
            a(f"v_mfma_f32_16x16x32_bf16 v[{c}:{c+3}], v[{WF+t*16+j*4}:{WF+t*16+j*4+3}], v[{XF+4*(f+t)}:{XF+4*(f+t)+3}], v[{c}:{c+3}]")
a("s_add_u32 s36, s36, 64")
a("s_add_u32 s37, s37, 40960")
a("s_cmp_lt_u32 s36, 1280")
a("s_cbranch_scc1 L_loop")
a("v_lshlrev_b32 v12, 5, v2")
a("v_add_u32 v12, s20, v12")
P=64
for p in range(4):
    a(f"global_load_dwordx4 v[{P+p*8}:{P+p*8+3}], v12, s[{8+2*p}:{9+2*p}]")
    a(f"global_load_dwordx4 v[{P+p*8+4}:{P+p*8+7}], v12, s[{8+2*p}:{9+2*p}] offset:16")
a("s_waitcnt vmcnt(0)")
SC=96; SH=112
a("s_mov_b32 s42, 0x3727c5ac")
a("s_mov_b32 s43, 0xbfb8aa3b")
for d in range(16):
    def unp(dst,p):
        src=P+p*8+(d>>1)
        if d&1: a(f"v_and_b32 v{dst}, 0xffff0000, v{src}")
        else: a(f"v_lshlrev_b32 v{dst}, 16, v{src}")
    unp(128,0); unp(129,1); unp(130,2); unp(131,3)
    a("v_add_f32 v129, s42, v129")
    a("v_rsq_f32 v129, v129")
    a("s_nop 0")
    a(f"v_mul_f32 v{SC+d}, v130, v129")
    a(f"v_fma_f32 v{SH+d}, -v128, v{SC+d}, v131")
a("s_movk_i32 s21, 1280")
a("v_mul_lo_u32 v13, v3, s21")
a("v_add_u32 v13, v13, v12")
for f in range(2):
    for d in range(16):
        r=d>>2; j=d&3
        c=ACC+(f*4+j)*4+r
        a(f"v_fma_f32 v{132+d}, v{c}, v{SC+d}, v{SH+d}")
        a(f"v_mul_f32 v148, s43, v{132+d}")
        a("v_exp_f32 v148, v148")
        a("s_nop 0")
        a("v_add_f32 v148, 1.0, v148")
        a("v_rcp_f32 v148, v148")
        a("s_nop 0")
        a(f"v_mul_f32 v{132+d}, v{132+d}, v148")
    O=152+f*8
    for q in range(8): a(f"v_cvt_pk_bf16_f32 v{O+q}, v{132+2*q}, v{133+2*q}")
    a(f"buffer_store_dwordx4 v[{O}:{O+3}], v13, s[32:35], 0 offen offset:{f*1280}")
    a(f"buffer_store_dwordx4 v[{O+4}:{O+7}], v13, s[32:35], 0 offen offset:{f*1280+16}")
a("L_end:")
a("s_endpgm")
a('.section .rodata,"a"')
a(".p2align 6")
a(f".amdhsa_kernel {NAME}_kernel")
a("  .amdhsa_next_free_vgpr 168\n  .amdhsa_next_free_sgpr 48\n  .amdhsa_accum_offset 168")
a("  .amdhsa_group_segment_fixed_size 0\n  .amdhsa_kernarg_size 72\n  .amdhsa_user_sgpr_count 2")
a("  .amdhsa_user_sgpr_kernarg_segment_ptr 1\n  .amdhsa_system_sgpr_workgroup_id_x 1")
a(".end_amdhsa_kernel")
open(sys.argv[1],'w').write("\n".join(L)+"\n")
```
